```python
import torch

def _softmax(x, axis=-1):
    return torch.softmax(x, dim=axis)
def _gelu(x):
    return torch.nn.functional.gelu(x, approximate="tanh")
def _silu(x):
    return torch.nn.functional.silu(x)
def _sigmoid(x):
    return torch.sigmoid(x)
def _layernorm(x, axis=-1, eps=1e-5):
    m = x.mean(dim=axis, keepdim=True)
    v = x.var(dim=axis, keepdim=True, unbiased=False)
    return (x - m) / torch.sqrt(v + eps)
def _scatter_add(tgt, idx, src, axis=0):
    return tgt.clone().index_add_(axis, idx, src)
def _segment_sum(src, seg, n):
    out = torch.zeros((n,) + src.shape[1:], dtype=src.dtype)
    return out.index_add_(0, seg, src)
def _pad(x, pw):
    flat = tuple(v for pair in reversed(pw) for v in pair)
    return torch.nn.functional.pad(x, flat)

kernel_name = 'standalone__linear_kernel_rfa__decode'

def setup_inputs():

    _w = (lambda a: (lambda t: t.to(torch.bfloat16) if t.is_floating_point() else t)(torch.as_tensor(a)))
    B, H, Sq, Sk, D, M = 1, 16, 1, 32768, 256, 8
    return {
        "q": _w((lambda *s: torch.randn(*s, dtype=torch.bfloat16) * 0.4)(B, H, Sq, D)),
        "k": _w((lambda *s: torch.randn(*s, dtype=torch.bfloat16) * 1.6)(B, H, Sk, D)),
        "v": _w((lambda *s: torch.randn(*s, dtype=torch.bfloat16) * 1.6)(B, H, Sk, D)),
        "omega": _w((lambda *s: torch.randn(*s, dtype=torch.bfloat16) * 1.6)(M, D)),
    }

def reference(q, k, v, omega):
    d = q.shape[-1]
    m = omega.shape[0]
    scale = float(d) ** -0.25
    qs = q * scale
    ks = k * scale
    q_proj = torch.einsum("bhsd,md->bhsm", qs, omega)
    k_proj = torch.einsum("bhsd,md->bhsm", ks, omega)
    q_sq = 0.5 * torch.einsum("bhsd,bhsd->bhs", qs, qs)[..., None]
    k_sq = 0.5 * torch.einsum("bhsd,bhsd->bhs", ks, ks)[..., None]
    inv_sqrt_m = float(m) ** -0.5
    phi_q = torch.exp(q_proj - q_sq) * inv_sqrt_m + 1e-6
    phi_k = torch.exp(k_proj - k_sq) * inv_sqrt_m + 1e-6
    kv = torch.einsum("bhsm,bhsd->bhmd", phi_k, v)
    z  = torch.einsum("bhsm->bhm", phi_k)
    num = torch.einsum("bhqm,bhmd->bhqd", phi_q, kv)
    den = torch.einsum("bhqm,bhm->bhq", phi_q, z)[..., None] + 1e-6
    return num / den
```

```python
import re
def regs(tok):
    tok=tok.strip()
    tok=tok.lstrip('-')
    m=re.fullmatch(r'abs\((.*)\)',tok)
    if m: tok=m.group(1)
    m=re.fullmatch(r'([vsa])\[(\d+):(\d+)\]',tok)
    if m: return {(m.group(1),i) for i in range(int(m.group(2)),int(m.group(3))+1)}
    m=re.fullmatch(r'([vsa])(\d+)',tok)
    if m: return {(m.group(1),int(m.group(2)))}
    if tok=='vcc': return {('s','vcc')}
    if tok=='exec': return {('s','exec')}
    if tok=='m0': return {('s','m0')}
    return set()
TRANS=('v_exp_f32','v_log_f32','v_rcp_f32','v_rsq_f32','v_sqrt_f32')
class Ins:
    def __init__(s,text):
        s.text=text
        t=text.split(';')[0].strip()
        p=t.split(None,1); s.op=p[0]
        rest=p[1] if len(p)>1 else ''
        ops=[o.strip() for o in rest.split(',')] if rest else []
        s.mods=''
        if ops:
            q=ops[-1].split(None,1)
            ops[-1]=q[0]; s.mods=q[1] if len(q)>1 else ''
        clean=[]
        for o in ops:
            q=o.split(None,1)
            clean.append(q[0])
        s.ops=clean
        op=s.op
        s.valu=op.startswith('v_') and not op.startswith('v_mfma')
        s.mfma=op.startswith('v_mfma')
        s.vmem=op.startswith('buffer_') or op.startswith('global_')
        s.ds=op.startswith('ds_')
        s.dpp='_dpp' in op
        s.trans=any(op.startswith(x) for x in TRANS)
        s.dot=op.startswith('v_dot')
        s.perm=op.startswith('v_permlane')
        s.rl=op.startswith('v_readfirstlane') or op.startswith('v_readlane')
        R=[regs(o) for o in s.ops]
        s.w=set(); s.r=set(); s.srcc=set(); s.ab=set(); s.sdata=set()
        if s.mfma:
            s.w=R[0]; s.ab=R[1]|R[2]; s.srcc=R[3]; s.r=s.ab|s.srcc
            s.sg='_f32' in op and op.endswith('x4_f32')
            s.passes=8 if s.sg else (8 if '32x32' in op else 4)
        elif s.valu:
            nd=1
            if op.startswith(('v_div_scale','v_add_co','v_sub_co','v_addc_co')): nd=2
            for x in R[:nd]: s.w|=x
            for x in R[nd:]: s.r|=x
            if op.startswith(('v_fmac','v_dot2c','v_writelane')) or s.dpp: s.r|=R[0]
            if s.perm: s.w|=R[1]; s.r|=R[0]
            if op.startswith('v_div_fmas'): s.r|={('s','vcc')}
            if op.startswith('v_cmpx'): s.w|={('s','exec')}
            if s.dot: s.srcc=R[3] if len(R)>3 else R[0]; s.ab=R[1]|R[2]
        elif s.vmem:
            if 'load' in op:
                s.w=R[0]
                for x in R[1:]: s.r|=x
            else:
                for x in R: s.r|=x
                s.sdata=R[0] if op.startswith('buffer') else R[1]
                if 'atomic' in op and 'sc0' in s.mods: s.w=R[0]
        elif s.ds:
            if op.startswith('ds_read') or 'bpermute' in op or 'swizzle' in op or '_rtn' in op:
                s.w=R[0]
                for x in R[1:]: s.r|=x
            else:
                for x in R: s.r|=x
        elif op.startswith('s_'):
            if op.startswith(('s_cmp','s_cbranch','s_branch','s_waitcnt','s_nop','s_barrier','s_sleep','s_endpgm','s_setprio')):
                for x in R: s.r|=x
            else:
                if R: s.w=R[0]
                for x in R[1:]: s.r|=x
        s.states=1
        if op=='s_nop': s.states=int(s.ops[0])+1
def need(p,c):
    n=0
    V=lambda S:{x for x in S if x[0] in 'va'}
    Sg=lambda S:{x for x in S if x[0]=='s'}
    if p.valu:
        wv=V(p.w); ws=Sg(p.w)
        if c.mfma and wv&c.r: n=max(n,2)
        if c.dpp and wv&c.r: n=max(n,2)
        if c.perm and wv&c.r: n=max(n,2)
        if c.rl and wv&c.r: n=max(n,1)
        if p.trans and c.valu and not c.trans and wv&c.r: n=max(n,1)
        if p.trans and (c.vmem or c.ds) and wv&c.r: n=max(n,1)
        if p.dot and (wv&(c.r|c.w)):
            if c.op==p.op and not (wv&c.ab): pass
            else: n=max(n,3)
        if c.vmem and ws&c.r: n=max(n,5)
        if c.valu and ws&c.r: n=max(n,4 if (c.op.startswith('v_div_fmas') or c.rl or c.op.startswith('v_writelane')) else 2)
        if ('s','exec') in ws and (c.dpp): n=max(n,5)
        if ('s','exec') in ws and (c.mfma or c.perm or c.rl): n=max(n,4)
        if c.op.startswith('s_') and ws&c.r: n=max(n,1)
    if p.mfma:
        P=p.passes
        if p.sg:
            a={4:6,8:10}[P]; ov={4:4,8:8}[P]
            if c.mfma:
                if p.w&c.ab: n=max(n,a)
                if p.w&c.srcc and not (c.sg and c.srcc==p.w): n=max(n,ov)
                if p.w&c.w and not p.w&c.srcc: n=max(n,a)
            elif (c.valu and p.w&(c.r|c.w)) or ((c.vmem or c.ds) and p.w&(c.r|c.w)): n=max(n,a)
        else:
            a={4:8,8:12}[P]; ov={4:6,8:10}[P]
            if c.mfma:
                if p.w&c.ab: n=max(n,a)
                if p.w&c.srcc and not (c.srcc==p.w and not c.sg and c.passes==P): n=max(n,ov)
                if p.w&c.w and not p.w&c.srcc: n=max(n,a)
            elif (c.valu and p.w&(c.r|c.w)) or ((c.vmem or c.ds) and p.w&(c.r|c.w)): n=max(n,a)
            if c.valu and p.srcc&c.w: n=max(n,{4:3,8:7}[P])
    if p.vmem and len(p.sdata)>=3 and (c.valu or c.mfma) and p.sdata&c.w: n=max(n,2)
    if p.vmem and len(p.sdata)>=3 and p.sdata&c.w: n=max(n,1)
    if p.op.startswith('s_') and ('s','m0') in p.w and (c.op.startswith('v_writelane') or 'lds' in c.mods): n=max(n,1)
    return n
class Asm:
    def __init__(s): s.out=[]; s.hist=[]; s.q=[]; s.nops=0
    def raw(s,t): s.out.append(t)
    def label(s,l): s.out.append(l+':')
    def __call__(s,text):
        for t in text.split('\n'):
            t=t.strip()
            if not t: continue
            if t.endswith(':') or t.startswith(';') or t.startswith('.'): s.out.append(t); continue
            c=Ins(t); d=0; pad=0
            for p in reversed(s.hist):
                pad=max(pad,need(p,c)-d); d+=p.states
                if d>24: break
            while pad>0:
                k=min(pad,16); n=Ins(f's_nop {k-1}'); s.hist.append(n); s.out.append('    '+n.text); pad-=k; s.nops+=k
            s.hist.append(c); s.out.append('    '+t)
    def vm(s,text,tag):
        s(text); s.q.append(tag)
    def waitfor(s,tag,extra=''):
        idx=max(i for i,t in enumerate(s.q) if t==tag)
        n=len(s.q)-1-idx
        assert n<=63
        s(f's_waitcnt vmcnt({n}){extra}'); s.q=s.q[idx+1:]
        return n
    def text(s): return '\n'.join(s.out)+'\n'
```

```python
import sys, math, struct
from asmb import Asm
KN="standalone__linear_kernel_rfa__decode_kernel"
def f2u(x): return struct.unpack('<I',struct.pack('<f',x))[0]
HDR='''; RFA (FAVOR+) linear attention decode, B=1 H=16 Sq=1 Sk=32768 D=256 M=8, bf16.
'''
def gen(D=2, SF=12, stamp=False, kflags="nt", vflags="nt", spin=200000, perturb=None):
    NW=4; NWG=256
    assert D%2==0
    NP=SF*2
    STATIC=SF<<20
    POOL=(16-SF)<<20
    WGCH=STATIC//16
    HD=D//2
    XA=NP-HD
    PART=0x10000; ZP=PART+(2<<20); WSSZ=ZP+8192
    BLK=2688; SS=1312; GS=320; WSTR=4*BLK; ZL=4*WSTR; LDS=ZL+1024
    a=Asm()
    a.raw(HDR+f"; @launch grid=({NWG},1,1) block=({NW*64},1,1) lds={LDS}")
    a.raw(f'.amdgcn_target "amdgcn-amd-amdhsa--gfx950"\n.text\n.globl {KN}\n.p2align 8\n.type {KN},@function\n{KN}:')
    vLane,vKo,vVo,vAo,vOne,vM0,vM1,vZ=0,1,2,3,4,5,6,7
    P=8; S=12; sqA,sqB=16,17; T=18
    AOP=24; OM=32; ACC=48; TK=80; vPq=82; vPo=83; FL=84; SL=88
    def Kr(d,c): b=SL+32*d+4*c; return f"v[{b}:{b+3}]"
    def Vr(d,c): b=SL+32*d+16+4*c; return b
    sHead,sJ,sW="s28","s29","s3"
    sStat,sPool,sX,sEv,sCntOff,sCntSz="s30","s31","s32","s33","s34","s35"
    sMask="s[36:37]"; sPo0,sPo1,sZo="s38","s39","s40"
    sOff=lambda d: f"s{44+d}"; sVal=lambda p: f"s{52+p}"
    st=lambda i: a(f"s_memrealtime s[{80+2*i}:{81+2*i}]") if stamp else None
    a(f"s_cmp_ge_u32 s2, {NWG}\ns_cbranch_scc1 L_done")
    st(0)
    a("s_load_dwordx4 s[4:7], s[0:1], 8")
    a("s_load_dwordx2 s[56:57], s[0:1], 0")
    a("s_load_dwordx4 s[60:63], s[0:1], 24")
    a("s_load_dwordx4 s[64:67], s[0:1], 40")
    a(f"v_lshrrev_b32 v1, 6, v0\nv_and_b32 v0, 63, v0\nv_readfirstlane_b32 {sW}, v1")
    a(f"s_lshr_b32 {sHead}, s2, 4\ns_and_b32 {sJ}, s2, 15")
    a(f"s_lshl_b32 {sPool}, {sHead}, 24\ns_mul_i32 {sStat}, {sJ}, {WGCH}\ns_add_u32 {sStat}, {sStat}, {sPool}")
    a(f"s_lshl_b32 s58, {sW}, 13\ns_add_u32 {sStat}, {sStat}, s58\ns_add_u32 {sPool}, {sPool}, {STATIC}")
    a(f"v_lshrrev_b32 v18, 4, v0\nv_and_b32 v19, 1, v0\nv_lshl_add_u32 v19, v18, 1, v19\nv_lshlrev_b32 v20, 4, v19")
    a(f"v_bfe_u32 v21, v0, 1, 3\nv_lshl_add_u32 v{vKo}, v21, 9, v20")
    a(f"v_and_b32 v22, 15, v0\nv_lshlrev_b32 v22, 4, v22\nv_lshl_add_u32 v{vVo}, v18, 10, v22")
    a("s_waitcnt lgkmcnt(0)")
    st(1)
    a("s_mov_b32 s8, s4\ns_and_b32 s9, s5, 0xffff\ns_mov_b32 s10, 0x10000000\ns_mov_b32 s11, 0x20000")
    a("s_mov_b32 s12, s6\ns_and_b32 s13, s7, 0xffff\ns_mov_b32 s14, 0x10000000\ns_mov_b32 s15, 0x20000")
    def loadK(d):
        for c in range(4): a.vm(f"buffer_load_dwordx4 {Kr(d,c)}, v{vKo}, s[8:11], {sOff(d)} offen offset:{128*c} {kflags}",f"K{d}")
    def loadV(d):
        for c in range(4):
            b=Vr(d,c); a.vm(f"buffer_load_dwordx4 v[{b}:{b+3}], v{vVo}, s[12:15], {sOff(d)} offen offset:{256*c} {vflags}",f"V{d}")
    a(f"s_mov_b32 {sOff(0)}, {sStat}")
    loadK(0); loadV(0)
    a(f"s_mov_b32 s24, s60\ns_and_b32 s25, s61, 0xffff\ns_mov_b32 s26, 4096\ns_mov_b32 s27, 0x20000")
    a(f"v_and_b32 v19, 1, v0\nv_bfe_u32 v21, v0, 2, 2\nv_lshl_add_u32 v19, v19, 2, v21\nv_lshlrev_b32 v19, 9, v19")
    a(f"v_bfe_u32 v21, v0, 1, 1\nv_lshl_add_u32 v21, v18, 1, v21\nv_lshl_add_u32 v19, v21, 4, v19")
    for c in range(4): a.vm(f"buffer_load_dwordx4 v[{OM+4*c}:{OM+4*c+3}], v19, s[24:27], 0 offen offset:{128*c}","OM")
    a(f"s_mov_b32 s20, s56\ns_and_b32 s21, s57, 0xffff\ns_mov_b32 s22, 8192\ns_mov_b32 s23, 0x20000\ns_lshl_b32 s58, {sHead}, 9")
    for c in range(4): a.vm(f"buffer_load_dwordx4 v[{ACC+4*c}:{ACC+4*c+3}], v20, s[20:23], s58 offen offset:{128*c}","Q")
    a(f"s_mov_b32 s16, s66\ns_and_b32 s17, s67, 0xffff\ns_mov_b32 s18, {WSSZ}\ns_mov_b32 s19, 0x20000")
    a(f"v_lshrrev_b32 v21, 5, v0\nv_and_b32 v22, 31, v0\nv_lshlrev_b32 v22, 4, v22\nv_lshl_add_u32 v{vPo}, v21, 13, v22")
    a(f"s_lshl_b32 {sPo0}, {sHead}, 17\ns_lshl_b32 s58, {sJ}, 9\ns_add_u32 {sPo0}, {sPo0}, s58\ns_lshl_b32 s58, {sW}, 15\ns_add_u32 {sPo0}, {sPo0}, s58\ns_add_u32 {sPo0}, {sPo0}, {PART}\ns_add_u32 {sPo1}, {sPo0}, 16384")
    a(f"s_lshl_b32 {sZo}, s2, 5\ns_add_u32 {sZo}, {sZo}, {ZP}\ns_lshl_b32 {sCntOff}, {sHead}, 8")
    for i in range(4): a(f"v_mov_b32 v{FL+i}, -1")
    a.vm(f"buffer_store_dwordx4 v[{FL}:{FL+3}], v{vPo}, s[16:19], {sPo0} offen sc1","MK")
    a.vm(f"buffer_store_dwordx4 v[{FL}:{FL+3}], v{vPo}, s[16:19], {sPo1} offen sc1","MK")
    a(f"v_cmp_eq_u32 vcc, 0, v0\nv_mov_b32 v{vAo}, 0x7ff00000\nv_cndmask_b32 v{vAo}, v{vAo}, 0, vcc")
    a(f"s_cmp_lg_u32 {sW}, 0\ns_cbranch_scc1 L_nomark")
    a(f"v_cmp_gt_u32 vcc, 2, v0\nv_lshlrev_b32 v21, 4, v0\nv_mov_b32 v22, 0x7ff00000\nv_cndmask_b32 v21, v22, v21, vcc")
    a(f"buffer_store_dwordx4 v[{FL}:{FL+3}], v21, s[16:19], {sZo} offen sc1")
    a(f"s_cmp_lg_u32 {sJ}, 0\ns_cbranch_scc1 L_nomark")
    a(f"v_mov_b32 v22, 0\nbuffer_store_dword v22, v{vAo}, s[16:19], {sCntOff} offen sc1")
    a("L_nomark:")
    a(f"s_mov_b32 s20, s66\ns_and_b32 s21, s67, 0xffff\ns_mov_b32 s22, 0\ns_mov_b32 s23, 0x20000\ns_mov_b32 {sCntSz}, 4096")
    for d in range(1,D):
        if d%2==0:
            a(f"s_add_u32 {sStat}, {sStat}, {NW*8192}\ns_mov_b32 {sOff(d)}, {sStat}")
            a(f"v_mov_b32 v{TK+d//2}, 0x2000")
            a.vm(f"buffer_atomic_add v{TK+d//2}, v{vAo}, s[20:23], {sCntOff} offen sc0 sc1","A")
        else: a(f"s_add_u32 {sOff(d)}, {sOff(d-1)}, 4096")
        loadK(d); loadV(d)
    a(f"s_add_u32 {sStat}, {sStat}, {NW*8192}\ns_mov_b32 {sX}, {HD}\ns_mov_b32 {sEv}, {2*HD}")
    for p in range(HD): a(f"s_mov_b32 {sVal(p)}, 1")
    a(f"v_mov_b32 v{TK}, 0")
    a(f"s_mov_b32 s36, 0xcccccccc\ns_mov_b32 s37, 0xcccccccc\nv_mov_b32 v{vOne}, 1.0\nv_mov_b32 v{vZ}, 0")
    a(f"v_and_b32 v18, 1, v0\nv_lshlrev_b32 v18, 4, v18\nv_mov_b32 v19, 0xffff\nv_lshlrev_b32 v18, v18, v19")
    a(f"v_cndmask_b32 v{vM0}, v18, 0, {sMask}\nv_cndmask_b32 v{vM1}, 0, v18, {sMask}")
    a(f"s_mov_b32 s24, s64\ns_and_b32 s25, s65, 0xffff\ns_mov_b32 s26, 256\ns_mov_b32 s27, 0x20000")
    L2E=f2u(1.4426950408889634*0.25)
    def kpart(kb, mid=None):
        for c in range(4):
            b=kb+4*c
            a(f"v_mfma_f32_16x16x32_bf16 v[{P}:{P+3}], v[{b}:{b+3}], v[{OM+4*c}:{OM+4*c+3}], "+("0" if c==0 else f"v[{P}:{P+3}]"))
            for r in range(4):
                acc=sqA if r%2==0 else sqB
                a(f"v_dot2_f32_bf16 v{acc}, v{b+r}, v{b+r}, "+("0" if (c==0 and r<2) else f"v{acc}"))
        if mid: mid()
        a(f"v_add_f32 v{sqA}, v{sqA}, v{sqB}")
        a(f"v_add_f32_dpp v{sqB}, v{sqA}, v{sqA} quad_perm:[1,0,3,2] row_mask:0xf bank_mask:0xf")
        a(f"v_mfma_f32_16x16x4_f32 v[{S}:{S+3}], v{sqB}, v{vOne}, 0")
        a(f"v_cndmask_b32 v{T}, v{P+2}, v{P+1}, {sMask}\nv_cndmask_b32 v{T+1}, v{P}, v{P+3}, {sMask}")
        a(f"v_add_f32_dpp v{T+1}, v{T}, v{T+1} quad_perm:[2,3,0,1] row_mask:0xf bank_mask:0xf")
        a(f"v_cndmask_b32 v{T}, v{S}, v{S+2}, {sMask}")
        a(f"v_cvt_pk_bf16_f32 v{T}, v{T+1}, v{T}")
        a(f"v_lshlrev_b32 v{T+1}, 16, v{T}\nv_and_b32 v{T}, 0xffff0000, v{T}")
        a(f"v_fmac_f32 v{T+1}, 0xbe000000, v{T}")
        a(f"v_cvt_pk_bf16_f32 v{T}, v{T+1}, v{T+1}\nv_and_b32 v{T}, 0xffff0000, v{T}")
        a(f"v_mul_f32 v{T}, {L2E:#x}, v{T}\nv_exp_f32 v{T}, v{T}")
        a(f"v_cvt_pk_bf16_f32 v{T}, v{T}, v{T}\nv_and_b32 v{T}, 0xffff0000, v{T}")
        a(f"v_mul_f32 v{T}, {f2u(8**-0.5):#x}, v{T}")
        a(f"v_cvt_pk_bf16_f32 v{T}, v{T}, v{T}\nv_and_b32 v{T}, 0xffff0000, v{T}")
        a(f"v_add_f32 v{T}, {f2u(1e-6):#x}, v{T}")
        a(f"v_cvt_pk_bf16_f32 v{T}, v{T}, v{T}")
        a(f"v_and_b32 v{T+1}, 0xffff0000, v{T}")
    a.waitfor("Q")
    st(2)
    kpart(ACC)
    a(f"v_and_b32 v{T+2}, 12, v0\nv_bfe_u32 v{T+3}, v0, 4, 1\nv_or_b32 v{T+2}, v{T+2}, v{T+3}\nv_lshlrev_b32 v{T+2}, 2, v{T+2}")
    a(f"ds_bpermute_b32 v{vPq}, v{T+2}, v{T+1}")
    for i in range(32): a(f"v_mov_b32 v{ACC+i}, 0")
    a("s_waitcnt lgkmcnt(0)")
    def acc(F,hh,s): b=ACC+((F*2+hh)*2+s)*4; return f"v[{b}:{b+3}]"
    def step(d):
        p=d//2
        if d%2==0: a(f"s_cmp_eq_u32 {sVal(p)}, 0\ns_cbranch_scc1 L_exit")
        a.waitfor(f"K{d}")
        def mid():
            if d%2==0:
                a(f"v_readfirstlane_b32 s58, v{TK+p}")
                a(f"s_add_u32 s59, s58, {sPool}\ns_cmp_lt_u32 s58, {POOL}\ns_cselect_b32 s58, 1, 0")
                a(f"s_cmp_lt_u32 {sX}, {NP}\ns_cselect_b32 {sOff(d)}, {sStat}, s59\ns_cselect_b32 {sVal(p)}, 1, s58")
                a(f"s_cmp_lg_u32 {sVal(p)}, 0\ns_cselect_b32 s10, s10, 0\ns_cselect_b32 s14, s14, 0\ns_cselect_b32 {sOff(d)}, {sOff(d)}, 0\ns_cselect_b32 {sCntSz}, {sCntSz}, 0")
                a(f"s_cmp_ge_u32 {sX}, {XA}\ns_cselect_b32 s22, {sCntSz}, 0")
                a(f"v_mov_b32 v{TK+p}, 0x2000")
                a.vm(f"buffer_atomic_add v{TK+p}, v{vAo}, s[20:23], {sCntOff} offen sc0 sc1","A")
                a(f"s_add_u32 {sStat}, {sStat}, {NW*8192}\ns_add_u32 {sX}, {sX}, 1")
            else:
                a(f"s_add_u32 {sOff(d)}, {sOff(d-1)}, 4096")
            loadK(d)
        kpart(SL+32*d, mid)
        a(f"v_add_f32 v{vZ}, v{vZ}, v{T+1}")
        for e in range(2):
            for F in range(2):
                k=2*e+F
                for t in range(2):
                    a(f"v_and_b32_dpp v{AOP+2*k+t}, v{T}, v{vM0+t} quad_perm:[{k},{k},{k},{k}] row_mask:0xf bank_mask:0xf")
        a.waitfor(f"V{d}")
        for e in range(2):
            for hh in range(2):
                b=Vr(d,2*e+hh)
                for F in range(2):
                    k=2*e+F
                    for s in range(2):
                        a(f"v_mfma_f32_16x16x16_bf16 {acc(F,hh,s)}, v[{AOP+2*k}:{AOP+2*k+1}], v[{b+2*s}:{b+2*s+1}], {acc(F,hh,s)}")
        loadV(d)
    steady=[]
    for d in range(D):
        if d%2==0: steady.append("A")
        steady+= [f"K{d}"]*4+[f"V{d}"]*4
    ent=[t for t in a.q]
    a.q=list(steady)
    a.raw(".p2align 6")
    a("L_loop:")
    n0=len(a.out)
    for d in range(D): step(d)
    assert a.q[-len(steady):]==steady or a.q==steady[-len(a.q):], (a.q,steady)
    a(f"s_cmp_lg_u32 {sX}, {sEv}\ns_cbranch_scc1 L_loop")
    E1,E2,E3=2*HD,XA-D,XA
    assert E1<E2<E3 and (E2-HD)%HD==0 and (E3-HD)%HD==0
    a(f"s_cmp_eq_u32 {sX}, {E2}\ns_cbranch_scc1 L_ev2\ns_cmp_eq_u32 {sX}, {E3}\ns_cbranch_scc1 L_ev3")
    st(3)
    a(f"s_mov_b32 {sEv}, {E2}\ns_barrier\ns_cmp_lg_u32 {sW}, 0\ns_cbranch_scc1 L_loop")
    a(f"v_mov_b32 v{T}, 1\nbuffer_store_byte v{T}, v{vAo}, s[24:27], s2 offen sc1\ns_branch L_loop")
    a("L_ev2:")
    a(f"s_mov_b32 {sEv}, {E3}\ns_lshl_b32 s58, {sHead}, 4")
    a(f"buffer_load_dwordx4 v[{FL}:{FL+3}], v{vAo}, s[24:27], s58 offen sc1\ns_branch L_loop")
    a("L_ev3:")
    a(f"s_mov_b32 {sEv}, 0\ns_mov_b32 s59, {spin}")
    a("L_chk:")
    a(f"v_and_b32 v{T}, v{FL}, v{FL+1}\nv_and_b32 v{T+1}, v{FL+2}, v{FL+3}\nv_and_b32 v{T}, v{T}, v{T+1}\nv_readfirstlane_b32 s58, v{T}")
    a(f"s_cmp_eq_u32 s58, 0x01010101\ns_cbranch_scc1 L_loop")
    a(f"s_sub_u32 s59, s59, 1\ns_cbranch_scc1 L_loop\ns_sleep 8\ns_lshl_b32 s58, {sHead}, 4")
    a(f"buffer_load_dwordx4 v[{FL}:{FL+3}], v{vAo}, s[24:27], s58 offen sc1\ns_waitcnt vmcnt(0)\ns_branch L_chk")
    a("L_exit:")
    st(4)
    a(f"v_lshrrev_b32 v18, 4, v0\nv_mul_u32_u24 v18, {GS}, v18\nv_and_b32 v19, 15, v0\nv_lshl_add_u32 v18, v19, 4, v18")
    a(f"s_mul_i32 s58, {sW}, {WSTR}\nv_add_u32 v18, s58, v18\ns_lshl_b32 s58, {sW}, 8\nv_lshl_add_u32 v19, v0, 2, s58")
    a("s_nop 4")
    for F in range(2):
        for hh in range(2):
            for s in range(2):
                a(f"ds_write_b128 v18, {acc(F,hh,s)} offset:{(F*2+hh)*BLK+s*SS}")
    a(f"ds_write_b32 v19, v{vZ} offset:{ZL}")
    a(f"v_bfe_u32 v20, v0, 4, 1\nv_mul_u32_u24 v20, {2*BLK}, v20\nv_bfe_u32 v21, v0, 2, 2\nv_mul_u32_u24 v21, {GS}, v21\nv_add_u32 v20, v20, v21")
    a(f"v_and_b32 v21, 1, v0\nv_mul_u32_u24 v21, {SS}, v21\nv_add_u32 v20, v20, v21")
    a(f"v_bfe_u32 v21, v0, 1, 1\nv_lshl_add_u32 v20, v21, 4, v20\nv_lshrrev_b32 v21, 5, v0\nv_lshl_add_u32 v20, v21, 5, v20")
    a(f"s_lshr_b32 s58, {sW}, 1\ns_mul_i32 s58, s58, {BLK}\ns_and_b32 s59, {sW}, 1\ns_lshl_b32 s59, s59, 7\ns_add_u32 s58, s58, s59\nv_add_u32 v20, s58, v20")
    a(f"v_lshlrev_b32 v21, 2, v0")
    a("s_waitcnt lgkmcnt(0)\ns_barrier")
    st(5)
    for q in range(2):
        for w in range(4):
            b=ACC+16*q+4*w
            a(f"ds_read_b128 v[{b}:{b+3}], v20 offset:{w*WSTR+q*64}")
    for q in range(2):
        b=ACC+16*q
        a(f"s_waitcnt lgkmcnt({4-4*q})")
        for h in range(2):
            a(f"v_pk_add_f32 v[{b+2*h}:{b+2*h+1}], v[{b+2*h}:{b+2*h+1}], v[{b+4+2*h}:{b+5+2*h}]")
            a(f"v_pk_add_f32 v[{b+8+2*h}:{b+9+2*h}], v[{b+8+2*h}:{b+9+2*h}], v[{b+12+2*h}:{b+13+2*h}]")
        for h in range(2):
            a(f"v_pk_add_f32 v[{b+2*h}:{b+2*h+1}], v[{b+2*h}:{b+2*h+1}], v[{b+8+2*h}:{b+9+2*h}]")
        for i in range(4): a(f"v_min_u32 v{b+i}, -2, v{b+i}")
        a(f"buffer_store_dwordx4 v[{b}:{b+3}], v{vPo}, s[16:19], {sPo0 if q==0 else sPo1} offen sc1")
    a(f"s_cmp_eq_u32 {sW}, 1\ns_cbranch_scc1 L_cons\ns_cmp_lg_u32 {sW}, 0\ns_cbranch_scc1 L_fin")
    for w in range(4): a(f"ds_read_b32 v{8+w}, v21 offset:{ZL+256*w}")
    a(f"v_and_b32 v18, 1, v0\nv_bfe_u32 v19, v0, 2, 2\nv_lshl_add_u32 v18, v18, 2, v19\nv_lshlrev_b32 v18, 2, v18")
    a(f"v_and_b32 v19, 0x32, v0\nv_cmp_eq_u32 vcc, 0, v19\nv_mov_b32 v19, 0x7ff00000\nv_cndmask_b32 v18, v19, v18, vcc")
    a("s_waitcnt lgkmcnt(0)")
    a("v_add_f32 v8, v8, v9\nv_add_f32 v10, v10, v11\nv_add_f32 v8, v8, v10")
    a("v_add_f32_dpp v8, v8, v8 quad_perm:[2,3,0,1] row_mask:0xf bank_mask:0xf")
    a("v_mov_b32 v9, v8\nv_permlane16_swap_b32 v8, v9\nv_add_f32 v8, v8, v9")
    a("v_mov_b32 v9, v8\nv_permlane32_swap_b32 v8, v9\nv_add_f32 v8, v8, v9\nv_min_u32 v8, -2, v8")
    a(f"buffer_store_dword v8, v18, s[16:19], {sZo} offen sc1\ns_branch L_fin")
    a("L_cons:")
    R=SL; Z0=SL+32
    a(f"s_lshl_b32 s58, {sHead}, 17\ns_lshl_b32 s59, {sJ}, 13\ns_add_u32 s58, s58, s59\ns_add_u32 s58, s58, {PART}\ns_add_u32 s59, s58, 4096")
    a(f"s_lshl_b32 s42, {sHead}, 9\ns_add_u32 s42, s42, {ZP}")
    a(f"v_lshlrev_b32 v18, 4, v0")
    a(f"v_and_b32 v19, 3, v0\nv_lshrrev_b32 v20, 5, v0\nv_lshl_add_u32 v19, v20, 2, v19\nv_lshlrev_b32 v19, 5, v19\nv_bfe_u32 v20, v0, 2, 3\nv_lshl_add_u32 v19, v20, 2, v19")
    def ldR(k): a(f"buffer_load_dwordx4 v[{R+4*k}:{R+4*k+3}], v18, s[16:19], {'s58' if k<4 else 's59'} offen offset:{1024*(k%4)} sc1")
    def ldZ(q): a(f"buffer_load_dword v{Z0+q}, v19, s[16:19], s42 offen offset:{256*q} sc1")
    for k in range(8): ldR(k)
    for q in range(2): ldZ(q)
    a(f"s_mov_b32 s24, s62\ns_and_b32 s25, s63, 0xffff\ns_mov_b32 s26, 8192\ns_mov_b32 s27, 0x20000\ns_lshl_b32 s43, s2, 5")
    a(f"v_and_b32 v20, 3, v0\nv_lshlrev_b32 v20, 2, v20\nv_bfe_u32 v21, v0, 4, 1\nv_lshl_add_u32 v20, v21, 1, v20\nv_lshrrev_b32 v21, 5, v0\nv_add_u32 v20, v20, v21\nv_lshlrev_b32 v20, 1, v20")
    a(f"v_and_b32 v21, 12, v0\nv_cmp_eq_u32 vcc, 0, v21\nv_mov_b32 v21, 0x7ff00000\nv_cndmask_b32 v20, v21, v20, vcc")
    a(f"s_mov_b32 s41, {spin}")
    a("L_poll:")
    a("s_waitcnt vmcnt(0)")
    MS=lambda k: f"s[{60+2*k}:{61+2*k}]"
    for k in range(8):
        b=R+4*k
        a(f"v_max3_u32 v{8+k}, v{b}, v{b+1}, v{b+2}\nv_max_u32 v{8+k}, v{8+k}, v{b+3}")
    for k in range(8): a(f"v_cmp_eq_u32 {MS(k)}, -1, v{8+k}")
    for q in range(2): a(f"v_cmp_eq_u32 {MS(8+q)}, -1, v{Z0+q}")
    a(f"s_or_b64 s[56:57], {MS(0)}, {MS(1)}")
    for k in range(2,10): a(f"s_or_b64 s[56:57], s[56:57], {MS(k)}")
    a("s_cbranch_scc0 L_ready")
    a("s_sub_u32 s41, s41, 1\ns_cbranch_scc1 L_ready")
    for k in range(8): a(f"s_mov_b64 exec, {MS(k)}"); ldR(k)
    for q in range(2): a(f"s_mov_b64 exec, {MS(8+q)}"); ldZ(q)
    a("s_mov_b64 exec, -1\ns_branch L_poll")
    a("L_ready:")
    st(6)
    for (x,y) in [(0,1),(2,3),(4,5),(6,7),(0,2),(4,6),(0,4)]:
        for h in range(2): a(f"v_pk_add_f32 v[{R+4*x+2*h}:{R+4*x+2*h+1}], v[{R+4*x+2*h}:{R+4*x+2*h+1}], v[{R+4*y+2*h}:{R+4*y+2*h+1}]")
    z=Z0
    a(f"v_add_f32 v{z}, v{z}, v{z+1}")
    a(f"v_permlane32_swap_b32 v{R}, v{R+1}\nv_permlane32_swap_b32 v{R+2}, v{R+3}")
    a(f"v_add_f32_dpp v{z}, v{z}, v{z} quad_perm:[1,0,3,2] row_mask:0xf bank_mask:0xf")
    a(f"v_add_f32 v{R}, v{R}, v{R+1}\nv_add_f32 v{R+2}, v{R+2}, v{R+3}")
    a(f"v_add_f32_dpp v{z}, v{z}, v{z} quad_perm:[2,3,0,1] row_mask:0xf bank_mask:0xf")
    a(f"v_cvt_pk_bf16_f32 v{R}, v{R}, v{R+2}")
    a(f"v_mov_b32 v{z+1}, v{z}")
    a(f"v_and_b32 v{R+1}, 0xffff0000, v{R}\nv_lshlrev_b32 v{R}, 16, v{R}")
    a(f"v_permlane32_swap_b32 v{z}, v{z+1}")
    a(f"v_mul_f32 v{R}, v{R}, v{vPq}\nv_mul_f32 v{R+1}, v{R+1}, v{vPq}")
    a(f"v_add_f32 v{z}, v{z}, v{z+1}")
    a(f"v_cvt_pk_bf16_f32 v{z}, v{z}, v{z}")
    a(f"v_permlane16_swap_b32 v{R}, v{R+1}")
    a(f"v_and_b32 v{z}, 0xffff0000, v{z}\nv_add_f32 v{R}, v{R}, v{R+1}\nv_mul_f32 v{z}, v{z}, v{vPq}")
    for ro in (4,8):
        a(f"v_add_f32_dpp v{R}, v{R}, v{R} row_ror:{ro} row_mask:0xf bank_mask:0xf")
        a(f"v_add_f32_dpp v{z}, v{z}, v{z} row_ror:{ro} row_mask:0xf bank_mask:0xf")
    a(f"v_mov_b32 v{z+1}, v{z}\nv_cvt_pk_bf16_f32 v{R}, v{R}, v{R}")
    a(f"v_permlane16_swap_b32 v{z}, v{z+1}\nv_and_b32 v{R}, 0xffff0000, v{R}\nv_add_f32 v{z}, v{z}, v{z+1}")
    a(f"v_cvt_pk_bf16_f32 v{z}, v{z}, v{z}\nv_and_b32 v{z}, 0xffff0000, v{z}\nv_add_f32 v{z}, {f2u(1e-6):#x}, v{z}")
    a(f"v_cvt_pk_bf16_f32 v{z}, v{z}, v{z}\nv_and_b32 v{z}, 0xffff0000, v{z}")
    n,dn=R,z
    a(f"""v_div_scale_f32 v8, s[56:57], v{dn}, v{dn}, v{n}
v_rcp_f32 v9, v8
v_div_scale_f32 v10, vcc, v{n}, v{dn}, v{n}
v_fma_f32 v11, -v8, v9, 1.0
v_fmac_f32 v9, v11, v9
v_mul_f32 v11, v10, v9
v_fma_f32 v12, -v8, v11, v10
v_fmac_f32 v11, v12, v9
v_fma_f32 v8, -v8, v11, v10
v_div_fmas_f32 v8, v8, v9, v11
v_div_fixup_f32 v8, v8, v{dn}, v{n}""")
    if perturb: a(perturb)
    a("v_cvt_pk_bf16_f32 v8, v8, v8")
    a("buffer_store_short v8, v20, s[24:27], s43 offen")
    a("L_fin:")
    if stamp:
        a("s_waitcnt vmcnt(0)")
        st(7)
        a("s_getreg_b32 s96, hwreg(HW_REG_XCC_ID)\ns_load_dwordx2 s[66:67], s[0:1], 48\ns_waitcnt lgkmcnt(0)")
        for i in range(8): a(f"v_writelane_b32 v8, s{80+2*i}, {i}")
        a(f"v_writelane_b32 v8, s96, 8\nv_writelane_b32 v8, {sX}, 9")
        a(f"s_lshl_b32 s58, s2, 2\ns_add_u32 s58, s58, {sW}\ns_lshl_b32 s58, s58, 6\ns_add_u32 s58, s58, 0x20000000")
        a("s_mov_b32 s16, s66\ns_and_b32 s17, s67, 0xffff\ns_mov_b32 s18, 0x40000000\ns_mov_b32 s19, 0x20000")
        a("v_lshlrev_b32 v9, 2, v0\nv_cmp_gt_u32 vcc, 16, v0\ns_and_saveexec_b64 s[56:57], vcc\nbuffer_store_dword v8, v9, s[16:19], s58 offen")
    a("L_done:\ns_endpgm")
    nv=max(SL+32*D, SL+34)
    a.raw(f""".section .rodata,"a"
.p2align 6
.amdhsa_kernel {KN}
  .amdhsa_next_free_vgpr {nv}
  .amdhsa_next_free_sgpr 102
  .amdhsa_accum_offset {(nv+3)//4*4}
  .amdhsa_group_segment_fixed_size 0
  .amdhsa_kernarg_size 56
  .amdhsa_user_sgpr_count 2
  .amdhsa_user_sgpr_kernarg_segment_ptr 1
  .amdhsa_system_sgpr_workgroup_id_x 1
  .amdhsa_float_denorm_mode_32 3
.end_amdhsa_kernel""")
    return a.text()
if __name__=="__main__":
    import os
    from mk import build
    os.makedirs("k",exist_ok=True)
    out=[]
    def mk(name,**kw):
        p=f"k/{name}.s"; open(p,"w").write(gen(**kw)); build(p); out.append(p)
    exp=sys.argv[1]
    if exp=="a":
        mk("v1_d2",D=2); mk("v1_d4",D=4); mk("v1_d2_st",D=2,stamp=True); mk("v1_d4_st",D=4,stamp=True)
    print(" ".join(out))
```
